```python
import torch

def _softmax(x, axis=-1):
    return torch.softmax(x, dim=axis)
def _gelu(x):
    return torch.nn.functional.gelu(x, approximate="tanh")
def _silu(x):
    return torch.nn.functional.silu(x)
def _sigmoid(x):
    return torch.sigmoid(x)
def _layernorm(x, axis=-1, eps=1e-5):
    m = x.mean(dim=axis, keepdim=True)
    v = x.var(dim=axis, keepdim=True, unbiased=False)
    return (x - m) / torch.sqrt(v + eps)
def _scatter_add(tgt, idx, src, axis=0):
    return tgt.clone().index_add_(axis, idx, src)
def _segment_sum(src, seg, n):
    out = torch.zeros((n,) + src.shape[1:], dtype=src.dtype)
    return out.index_add_(0, seg, src)
def _pad(x, pw):
    flat = tuple(v for pair in reversed(pw) for v in pair)
    return torch.nn.functional.pad(x, flat)

kernel_name = 'gated_mix__grouped_kv_mqa__glu_gated_bilinear__prompt'

def setup_inputs():

    _w = (lambda a: (lambda t: t.to(torch.bfloat16) if t.is_floating_point() else t)(torch.as_tensor(a)))
    def _A_setup():
        B, S, D, H = 1, 2048, 448, 16
        Dh = D // H
        return {
            "x": _w((lambda *s: torch.randn(*s, dtype=torch.bfloat16) * 0.05)(B, S, D)),
            "wq": _w((lambda *s: torch.randn(*s, dtype=torch.bfloat16) * 0.8)(D, H * Dh)),
            "wk": _w((lambda *s: torch.randn(*s, dtype=torch.bfloat16) * 0.8)(D, Dh)),
            "wv": _w((lambda *s: torch.randn(*s, dtype=torch.bfloat16) * 0.05)(D, Dh)),
            "wo": _w((lambda *s: torch.randn(*s, dtype=torch.bfloat16) * 0.05)(H * Dh, D)),
        }
    _A_in = _A_setup()

    def _B_setup():
        B, S, D, F = 1, 2048, 448, 1792
        return {
            "x": _w((lambda *s: torch.randn(*s, dtype=torch.bfloat16) * 0.05)(B, S, D)),
            "w_gate": _w((lambda *s: torch.randn(*s, dtype=torch.bfloat16) * 0.8)(D, F) * (D ** -0.5)),
            "w_up": _w((lambda *s: torch.randn(*s, dtype=torch.bfloat16) * 0.8)(D, F) * (D ** -0.5)),
            "w_down": _w((lambda *s: torch.randn(*s, dtype=torch.bfloat16) * 0.8)(F, D) * (F ** -0.5)),
        }
    _B_in = _B_setup()

    return {
        "A_x": _A_in["x"],
        "A_wq": _A_in["wq"],
        "A_wk": _A_in["wk"],
        "A_wv": _A_in["wv"],
        "A_wo": _A_in["wo"],
        "B_x": _B_in["x"],
        "B_w_gate": _B_in["w_gate"],
        "B_w_up": _B_in["w_up"],
        "B_w_down": _B_in["w_down"],
        "gate_w": _w((lambda *s: torch.randn(*s, dtype=torch.bfloat16) * 0.05)(448) * 16.0),
    }

def reference(A_x, A_wq, A_wk, A_wv, A_wo, B_x, B_w_gate, B_w_up, B_w_down, gate_w):
    def _A_ref(x, wq, wk, wv, wo):
        B, S, D = x.shape
        H = 16
        Dh = D // H
        q = (lambda x, *d: x.permute(*d))((x @ wq).reshape(B, S, H, Dh), 0, 2, 1, 3)
        k = x @ wk
        v = x @ wv
        scores = torch.einsum("bhqd,bkd->bhqk", q, k) * (Dh ** -0.5)
        p = _softmax(scores, axis=-1)
        o = torch.einsum("bhqk,bkd->bhqd", p, v)
        return (lambda x, *d: x.permute(*d))(o, 0, 2, 1, 3).reshape(B, S, H * Dh) @ wo

    def _B_ref(x, w_gate, w_up, w_down):
        g = torch.einsum("bsd,df->bsf", x, w_gate)
        u = torch.einsum("bsd,df->bsf", x, w_up)
        h = g * u
        return torch.einsum("bsf,fd->bsd", h, w_down)

    x = A_x
    g = _sigmoid((x * gate_w).sum(-1, keepdims=True))
    a = _A_ref(x, A_wq, A_wk, A_wv, A_wo)
    b = _B_ref(x, B_w_gate, B_w_up, B_w_down)
    return g * a + (1 - g) * b
```

```python
import re

class Asm:
    def __init__(self):
        self.lines = []
    def __call__(self, s):
        for l in s.split("\n"):
            l = l.rstrip()
            if l.strip():
                self.lines.append(l if l.startswith(" ") or l.strip().endswith(":") or l.startswith(".") or l.startswith(";") else "    " + l)
    def label(self, name):
        self.lines.append(f"{name}:")
    def comment(self, s):
        self.lines.append(f"    ; {s}")
    def text(self):
        return "\n".join(self.lines) + "\n"

def vr(b, n=1):
    return f"v{b}" if n == 1 else f"v[{b}:{b+n-1}]"
def ar(b, n=1):
    return f"a{b}" if n == 1 else f"a[{b}:{b+n-1}]"
def sr(b, n=1):
    return f"s{b}" if n == 1 else f"s[{b}:{b+n-1}]"

_reg = re.compile(r"^(-|abs\()?([vas])(?:(\d+)|\[(\d+):(\d+)\])\)?$")
def regs_of(op):
    op = op.strip()
    if op in ("vcc",): return {("s", 106), ("s", 107)}
    if op in ("exec",): return {("s", 126), ("s", 127)}
    if op == "m0": return {("s", 124)}
    op2 = op.replace("|", "")
    m = _reg.match(op2)
    if not m: return set()
    k = m.group(2)
    if m.group(3) is not None: return {(k, int(m.group(3)))}
    return {(k, i) for i in range(int(m.group(4)), int(m.group(5)) + 1)}

TRANS = ("v_exp_", "v_log_", "v_rcp_", "v_rsq_", "v_sqrt_", "v_sin_", "v_cos_")
class Ins:
    def __init__(self, text, lineno):
        self.text = text.strip(); self.lineno = lineno
        t = self.text.split(";")[0].strip()
        parts = t.split(None, 1)
        self.op = parts[0]
        rest = parts[1] if len(parts) > 1 else ""
        ops = [o.strip() for o in rest.split(",")] if rest else []
        if ops:
            last = ops[-1].split()
            self.mods = last[1:]
            ops[-1] = last[0] if last else ""
        else: self.mods = []
        self.ops = ops
        op = self.op
        self.is_mfma = op.startswith("v_mfma")
        self.is_valu = op.startswith("v_") and not self.is_mfma
        self.is_trans = op.startswith(TRANS)
        self.is_salu = op.startswith("s_")
        self.is_vmem = op.startswith(("buffer_", "global_"))
        self.is_ds = op.startswith("ds_")
        self.w = set(); self.r = set(); self.srcc = set(); self.ab = set()
        R = [regs_of(o) for o in ops]
        if self.is_mfma:
            self.w = R[0]; self.ab = R[1] | R[2]; self.srcc = R[3]; self.r = self.ab | self.srcc
            self.passes = 8 if "32x32x16" in op else 4
        elif self.is_valu:
            if op.startswith("v_cmp"):
                self.w = R[0]; self.r = set().union(*R[1:])
            elif op.startswith(("v_add_co", "v_sub_co", "v_addc_co", "v_subb_co")):
                self.w = R[0] | R[1]; self.r = set().union(*R[2:])
            elif op.startswith("v_permlane32_swap") or op.startswith("v_permlane16_swap") or op.startswith("v_swap"):
                self.w = R[0] | R[1]; self.r = R[0] | R[1]
            elif op.startswith(("v_fmac", "v_pk_fmac", "v_dot2c")):
                self.w = R[0]; self.r = set().union(*R)
            elif op == "v_nop": pass
            else:
                self.w = R[0]; self.r = set().union(*R[1:]) if len(R) > 1 else set()
                if "sdwa" in op: self.r |= R[0]
        elif self.is_vmem:
            lds = "lds" in self.mods
            if "load" in op and not lds:
                self.w = R[0]; self.r = set().union(*R[1:])
            else:
                self.r = set().union(*R)
                if lds: self.r |= {("s", 124)}
            self.store_data = set()
            if "store" in op or "atomic" in op:
                self.store_data = R[0] if op.startswith("buffer_") else R[1]
                if "atomic" in op and "sc0" in self.mods: self.w = R[0]
        elif self.is_ds:
            if op.startswith(("ds_read", "ds_bpermute", "ds_permute", "ds_swizzle")):
                self.w = R[0]; self.r = set().union(*R[1:])
            else:
                self.r = set().union(*R)
        elif self.is_salu:
            if op.startswith(("s_cmp", "s_cbranch", "s_branch", "s_waitcnt", "s_barrier", "s_nop", "s_endpgm", "s_setprio", "s_sleep", "s_bitcmp")):
                self.r = set().union(*R) if R else set()
            else:
                self.w = R[0] if R else set(); self.r = set().union(*R[1:]) if len(R) > 1 else set()
                if "saveexec" in op: self.w |= {("s", 126), ("s", 127)}
        self.states = 1
        if op == "s_nop": self.states = int(ops[0], 0) + 1

def check_seq(seq, report):
    n = len(seq)
    for i, p in enumerate(seq):
        dist = 0
        for j in range(i + 1, min(n, i + 24)):
            c = seq[j]
            need = 0; why = ""
            vw = {x for x in p.w if x[0] in "va"}
            sw = {x for x in p.w if x[0] == "s"}
            if p.is_mfma:
                big = {8: 12, 4: 8}[p.passes]
                if c.is_mfma:
                    if c.ab & p.w: need, why = big, "mfma D->A/B"
                    elif c.srcc & p.w:
                        if c.srcc == p.w and c.passes == p.passes: need = 0
                        else: need, why = {8: 10, 4: 6}[p.passes], "mfma D->C overlap"
                    elif c.w & p.w and not (c.srcc & p.w):
                        need, why = {8: 10, 4: 6}[p.passes], "mfma WAW"
                elif (c.is_valu or c.is_vmem or c.is_ds) and ((c.r | c.w) & p.w):
                    need, why = big, "mfma D->valu/mem"
                if c.is_valu and (c.w & p.srcc):
                    nn = {8: 7, 4: 3}[p.passes]
                    if nn > need: need, why = nn, "mfma C WAR"
            elif p.is_valu:
                if c.is_mfma and (c.r & vw): need, why = 2, "valu->mfma"
                if c.is_valu and c.op.startswith("v_permlane") and (c.r & vw): need, why = 2, "valu->permlane"
                if p.is_trans and c.is_valu and not c.is_trans and (c.r & vw): need, why = max(need, 1), "trans->valu"
                if p.is_trans and c.is_mfma and (c.r & vw): need, why = 2, "trans->mfma"
                if c.is_valu and c.op.startswith(("v_readlane", "v_readfirstlane")) and (c.r & vw): need, why = max(need, 1), "valu->readlane"
                if sw:
                    if c.is_vmem and (c.r & sw): need, why = 5, "valu sgpr->vmem"
                    if c.is_valu and (c.r & sw): need, why = max(need, 2), "valu sgpr->valu"
                    if c.is_valu and c.op.startswith(("v_readlane", "v_writelane")) and (c.r & sw): need, why = 4, "valu sgpr->lanesel"
                    if ("s", 126) in sw and c.is_mfma: need, why = 4, "valu exec->mfma"
                if "dpp" in c.text and (c.r & vw): need, why = max(need, 2), "valu->dpp"
                if "sdwa" in p.op and c.is_valu and ((c.r | c.w) & vw): need, why = max(need, 1), "sdwa->valu"
            elif p.is_salu:
                if ("s", 124) in p.w and c.is_vmem and "lds" in c.mods: need, why = 1, "m0->dma"
            elif p.is_vmem:
                sd = getattr(p, "store_data", set())
                if len(sd) >= 3 and (c.w & sd):
                    need, why = (2 if c.is_valu else 1), "store data WAR"
            if need > dist:
                report.append(f"HAZARD {why}: need {need} have {dist}\n   L{p.lineno}: {p.text}\n   L{c.lineno}: {c.text}")
            dist += c.states
            if dist >= 20: break

def check_text(text):
    ins = []; labels = {}
    for ln, l in enumerate(text.split("\n"), 1):
        s = l.split(";")[0].strip()
        if not s or s.startswith("."): continue
        if s.endswith(":"):
            labels[s[:-1]] = len(ins); continue
        ins.append(Ins(l, ln))
    rep = []
    seg = []
    for x in ins:
        seg.append(x)
        if x.op in ("s_endpgm", "s_branch"):
            check_seq(seg, rep); seg = []
    if seg: check_seq(seg, rep)
    for i, x in enumerate(ins):
        if x.op.startswith(("s_cbranch", "s_branch")):
            t = labels.get(x.ops[0])
            if t is None: continue
            a = ins[max(0, i - 24): i + 1]
            b = []
            for y in ins[t: t + 24]:
                b.append(y)
                if y.op in ("s_endpgm", "s_branch"): break
            r2 = []
            check_seq(a + b, r2)
            rep += [r for r in r2 if r not in rep]
    return rep
```

```python
import sys, math, struct
sys.path.insert(0, "gen")
from asmlib import *

NAME = "gated_mix__grouped_kv_mqa__glu_gated_bilinear__prompt"
KNAME = NAME + "_kernel"
KV_OFF  = 0x000000
GATE_OFF= 0x040000
EP_OFF  = 0x043000
F1_OFF  = 0x044000
F2_OFF  = 0x080000
F2B_OFF = 0x0A0000
B2_OFF  = 0x100000
WS_SIZE = 0x1000000
SZ_X = 2048*448*2; SZ_WQ = 448*448*2; SZ_WK = 448*28*2; SZ_WG = 448*1792*2; SZ_OUT = SZ_X
def f32bits(x): return struct.unpack("<I", struct.pack("<f", x))[0]
LOG2E = math.log2(math.e)
QSCALE = LOG2E * (28 ** -0.5)
STG = 53248
R_L = STG; R_SZ = 12288
def uoff(u): return u*2048 if u < 6 else STG + (u-6)*2048
SEQ = [6, 7, 8, 9, 10, 11, 0, 1, 2, 3, 4]
QO = uoff(5)
def xoff(ch): return uoff(5 + ch//2) + (ch % 2)*1024
ORED_L = 0
TAG_L = 3*STG
LDS_SIZE = TAG_L + 256
W2_L = 114688; GW_L = 143360
SPIN_MAX = 1 << 16

sI, sJ, sW, sV, sJH, sNP, sTAG = 60, 61, 62, 63, 64, 65, 66
sTB, sG = 30, 31
X_, WQ_, WA_, WB_, WS_, M1_, M2_ = 32, 36, 40, 44, 48, 52, 56
def S4(b): return f"s[{b}:{b+3}]"

OPT = dict(diag=0, bgrp=0, agrp=0, rs=0, rwg=100, pattern=5, prioA=3, nr=8, wah=2, nr1=12, nc0=0, nc1=4, nc2=12, xp=1, nd0=0, ra=0, rb=0, kp=2,
           npoll=19, nchk=23, b0=6, b1=8, nb1=2, lag=5, osc=0, budget=5, bpos=8, opos=1, osl=0, pf=12, b2=10, b3=13, ntl=6, ntw=13, hnt=0, map=0, wnt=0, cpf=1, rot=0, spf=2, nbk=1, sl=2, kw=1, rc=0, nda=6, oth=4)

class VM:
    def __init__(s): s.q = []
    def issue(s, tag): s.q.append(tag)
    def wait_for(s, tag):
        idx = max(i for i, t in enumerate(s.q) if t == tag)
        n = len(s.q) - 1 - idx
        s.q = s.q[idx+1:]
        return n

class LQ:
    def __init__(s, a, age=5): s.a = a; s.q = []; s.t = 0; s.age = age
    def __call__(s, text):
        for l in text.split("\n"):
            if not l.strip(): continue
            i = Ins(l, 0)
            need = -1
            for k, (w, t) in enumerate(s.q):
                if w & (i.r | i.w): need = k
            if i.is_ds and len(s.q) >= 15: need = max(need, len(s.q) - 15)
            if need >= 0:
                for k, (w, t) in enumerate(s.q):
                    if t <= s.t - s.age: need = max(need, k)
                s.a(f"s_waitcnt lgkmcnt({len(s.q) - 1 - need})")
                s.q = s.q[need+1:]
            s.a(l)
            if i.is_ds: s.q.append((set(i.w), s.t))
            if i.is_mfma: s.t += 1
    def drain(s):
        if s.q: s.a("s_waitcnt lgkmcnt(0)")
        s.q = []

def srd(a, d, lo, size):
    a(f"s_mov_b32 s{d}, s{lo}")
    a(f"s_mov_b32 s{d+1}, s{lo+1}")
    a(f"s_mov_b32 s{d+2}, {size}")
    a(f"s_mov_b32 s{d+3}, 0x00020000")

def mfma(d, a_, b_, c=None):
    cs = "0" if c is None else vr(c, 16)
    return f"v_mfma_f32_32x32x16_bf16 {vr(d,16)}, {vr(a_,4)}, {vr(b_,4)}, {cs}"

DIAG_OFF = 0x8000000
INB = [0]
def diag_start(a):
    if OPT["rs"]:
        if OPT["rc"]: a("s_memtime s[88:89]"); a("s_memtime s[90:91]")
        if OPT["rc"] != 2: a("s_memrealtime s[84:85]"); a("s_memrealtime s[86:87]")
        return
    if not OPT["diag"]: return
    a("s_memrealtime s[84:85]"); a("s_memtime s[86:87]")
def diag_stamp(a, k, grp=0):
    if OPT["rs"]:
        if grp == OPT["agrp"] and OPT["rs"] == 10*INB[0] + k + 1: a("s_memtime s[90:91]" if OPT["rc"] else "s_memrealtime s[86:87]")
        return
    if not OPT["diag"] or INB[0] or OPT["agrp"] != grp: return
    a(f"s_memtime s[{88+2*k}:{89+2*k}]")
def bstamp(a, k, grp):
    if not OPT["diag"] or OPT["bgrp"] != grp: return
    a("s_memtime s[88:89]"); a("s_waitcnt lgkmcnt(0)"); a(f"s_mov_b32 s{90+k}, s88")
_dn = [0]
def diag_end(a, li):
    _dn[0] += 1
    lab = f"DG{_dn[0]}"
    if OPT["rs"]:
        if li != OPT["rs"] // 10: return
        a(f"s_cmp_lg_u32 s2, {OPT['rwg']}"); a(f"s_cbranch_scc1 {lab}")
        a(f"s_cmp_lg_u32 s{sW}, 0"); a(f"s_cbranch_scc1 {lab}")
        a("s_waitcnt vmcnt(0) lgkmcnt(0)")
        if OPT["rs"] % 10 == 9:
            a("s_memtime s[90:91]" if OPT["rc"] else "s_memrealtime s[86:87]"); a("s_waitcnt lgkmcnt(0)")
        if OPT["rc"] == 2:
            a("s_memrealtime s[86:87]"); a("s_waitcnt lgkmcnt(0)")
        if OPT["rc"]:
            a("s_sub_u32 s90, s90, s88"); a("s_lshr_b32 s90, s90, 4"); a("s_add_u32 s86, s86, s90")
        a("s_add_u32 s86, s86, 6000")
        a.label(lab + "_S")
        a("s_memrealtime s[4:5]"); a("s_waitcnt lgkmcnt(0)")
        a("s_sub_u32 s5, s4, s86"); a("s_cmp_lt_i32 s5, 0"); a(f"s_cbranch_scc1 {lab}_S")
        a.label(lab)
        return
    if not OPT["diag"]: return
    a("s_waitcnt vmcnt(0) lgkmcnt(0)")
    a("s_memrealtime s[4:5]"); a("s_memtime s[6:7]")
    a(f"s_add_u32 s8, s28, {DIAG_OFF + li*512*64}"); a("s_addc_u32 s9, s29, 0")
    a("s_mov_b32 s10, 32768"); a("s_mov_b32 s11, 0x00020000")
    a("s_lshl_b32 s12, s2, 6")
    a("s_waitcnt lgkmcnt(0)")
    a("v_mov_b32 v2, 0")
    vals = ["s84", "s4", "s86", "s6"] + ([f"s{90+k}" for k in range(12)] if li else [f"s{88+2*k}" for k in range(6)])
    a(f"s_cmp_lg_u32 s{sW}, 0"); a(f"s_cbranch_scc1 {lab}")
    for k, v in enumerate(vals):
        a(f"v_mov_b32 v3, {v}")
        a(f"buffer_store_dword v3, v2, s[8:11], s12 offen offset:{4*k}")
    a.label(lab)

_pn = [0]
def lab(p):
    _pn[0] += 1
    return f"{p}{_pn[0]}"
OOL = Asm()
def slow(a, body):
    L = lab("SL")
    a(f"s_cbranch_scc0 {L}")
    a.label(L + "B")
    OOL.label(L)
    body(OOL)
    OOL(f"s_branch {L}B")
def spin_tail(a, L):
    a("s_sub_u32 s72, s72, 1"); a("s_cmp_lg_u32 s72, 0"); a(f"s_cbranch_scc1 {L}")
def poll(a, voff, soff, need, vt, sleep=2):
    L = lab("POLL"); D = L + "D"
    a(f"s_mov_b32 s72, {SPIN_MAX}")
    a(f"s_mov_b64 exec, s[{need}:{need+1}]")
    a.label(L)
    a(f"buffer_load_dword v{vt}, v{voff}, {S4(WS_)}, {soff} offen sc1")
    a("s_waitcnt vmcnt(0)")
    a(f"v_cmp_eq_u32 vcc, s{sTAG}, v{vt}")
    a("s_cmp_eq_u64 vcc, exec")
    a(f"s_cbranch_scc1 {D}")
    a(f"s_sleep {sleep}")
    spin_tail(a, L)
    a.label(D)
    a("s_mov_b64 exec, -1")
def lds_wait(a, vaddr, vt, n, off=0, sleep=0):
    L = lab("LS"); D = L + "D"
    a(f"s_mov_b32 s72, {SPIN_MAX*16}")
    a.label(L)
    a(f"ds_read_b32 v{vt}, v{vaddr} offset:{off}")
    a("s_waitcnt lgkmcnt(0)")
    a(f"v_readfirstlane_b32 s70, v{vt}")
    a(f"s_cmp_ge_u32 s70, {n}")
    a(f"s_cbranch_scc1 {D}")
    if sleep: a(f"s_sleep {sleep}")
    spin_tail(a, L)
    a.label(D)
def arrive(vaddr, vone, off):
    return f"s_mov_b64 exec, 1\nds_add_u32 v{vaddr}, v{vone} offset:{off}\ns_mov_b64 exec, -1"
def spin_tag(a, vt, vz, D):
    L = lab("TAGS")
    a(f"s_mov_b32 s72, {SPIN_MAX}")
    a.label(L)
    a(f"buffer_load_dword v{vt}, v{vz}, {S4(M2_)}, 0 offen sc1")
    a("s_waitcnt vmcnt(0)")
    a(f"v_readfirstlane_b32 s{sTAG}, v{vt}")
    a(f"s_cmp_lg_u32 s{sTAG}, 0")
    a(f"s_cbranch_scc1 {D}")
    a("s_sleep 2")
    spin_tail(a, L)
    a.label(D)
def kvp_issue(vo, vt):
    return f"s_mov_b64 exec, s[44:45]\nbuffer_load_dword v{vt}, v{vo}, {S4(WS_)}, 0 offen sc1\ns_mov_b64 exec, -1"
def kvp_check(a, vo, vt):
    L = lab("KVP"); D = L + "D"
    a(f"s_mov_b32 s72, {SPIN_MAX}")
    a.label(L)
    a("s_waitcnt vmcnt(0)")
    a(f"v_cmp_eq_u32 vcc, s{sTAG}, v{vt}")
    a("s_and_b64 vcc, vcc, s[44:45]")
    a("s_cmp_eq_u64 vcc, s[44:45]")
    a(f"s_cbranch_scc1 {D}")
    a("s_sleep 2")
    a(kvp_issue(vo, vt))
    spin_tail(a, L)
    a("s_waitcnt vmcnt(0)")
    a.label(D)
def o_addr(a, dst, tmp):
    a(f"s_lshl_b32 s{dst}, s{sI}, 2")
    a(f"s_add_u32 s{dst}, s{dst}, s{sW}")
    a(f"s_mul_i32 s{dst}, s{dst}, 72")
    a(f"s_cmp_ge_u32 s{sJ}, 7")
    a(f"s_addc_u32 s{tmp}, s{sJ}, 0")
    a(f"s_cmp_eq_u32 s{sJ}, 14")
    a(f"s_cselect_b32 s{tmp}, 7, s{tmp}")
    a(f"s_min_u32 s{tmp}, s{tmp}, 15")
    a(f"s_add_u32 s{dst}, s{dst}, s{tmp}")
    a(f"s_add_u32 s{dst}, s{dst}, 56")
    a(f"s_lshl_b32 s{dst}, s{dst}, 11")
    a(f"s_add_u32 s{dst}, s{dst}, {B2_OFF}")
def o_clear(a, vt):
    o_addr(a, 67, 68)
    for r in range(4): a(f"v_mov_b32 v{vt+r}, -1")
    a(f"buffer_store_dwordx4 {vr(vt,4)}, v1, {S4(WS_)}, s67 offen sc1")
    a(f"buffer_store_dwordx4 {vr(vt,4)}, v1, {S4(WS_)}, s67 offen offset:1024 sc1")
def spare_pf(a):
    srd(a, WB_, 20, SZ_WG)
    srd(a, M2_, 12, SZ_WQ)
    a(f"s_lshl_b32 s68, s{sI}, 1")
    a(f"s_add_u32 s68, s68, s{sJH}")
    a("s_lshl_b32 s68, s68, 2")
    a(f"s_add_u32 s68, s68, s{sW}")
    a("s_mul_i32 s69, s68, 3136")
    a("s_mul_i32 s68, s68, 12544")
    for k in range(13):
        if k % 4 == 0 and k: a("s_add_u32 s68, s68, 4096")
        a(f"buffer_load_dwordx4 v[64:67], v1, {S4(WB_)}, s68 offen offset:{(k%4)*1024}")
    for k in range(4):
        a(f"buffer_load_dwordx4 v[64:67], v1, {S4(M2_)}, s69 offen offset:{k*1024}")

def lane_fields(a, vh, vr_, vhc, vkr):
    a(f"v_lshrrev_b32 v{vh}, 5, v0")
    a(f"v_bfe_u32 v{vr_}, v0, 2, 2")
    a(f"v_bfe_u32 v{vhc}, v0, 4, 1")
    a(f"v_lshlrev_b32 v{vhc}, 5, v{vhc}")
    a(f"v_and_b32 v{vkr}, 3, v0")
    a(f"v_lshl_add_u32 v{vhc}, v{vkr}, 3, v{vhc}")
    a(f"v_lshl_add_u32 v{vkr}, v{vh}, 3, v{vr_}")
def zero(b, n): return [f"v_mov_b64 {vr(b+r,2)}, 0" for r in range(0, n, 2)]

KVR = [216, 232, 16, 32]; Q, P, O = 136, 64, 72; SB = [200, 184]
def kvload(r, soff):
    return [f"buffer_load_dwordx4 {vr(KVR[r]+4*m,4)}, v1, {S4(M1_)}, {soff} offen offset:{1024*m} sc1" for m in range(4)]
def kv_first():
    l = kvload(0, "0") + kvload(1, "s73")
    l.append(f"v_and_b32 v15, 31, v0\nv_lshlrev_b32 v15, 2, v15\nbuffer_load_dword v14, v15, {S4(WS_)}, s69 offen sc1\ns_movk_i32 s73, 8192")
    return l
def q_pack(c, t, va):
    l = [f"v_pk_mul_f32 {vr(c+r,2)}, {vr(c+r,2)}, s[76:77]" for r in range(0, 16, 2)]
    l += [f"v_cvt_pk_bf16_f32 v{t+r}, v{c+2*r}, v{c+2*r+1}" for r in range(8)]
    l += [f"v_cndmask_b32 v{t+6}, 0, v{t+6}, s[78:79]", f"v_cndmask_b32 v{t+7}, 0, v{t+7}, s[78:79]"]
    l += [f"ds_write_b128 v{va}, {vr(t,4)} offset:{QO}", f"ds_write_b128 v{va}, {vr(t+4,4)} offset:{QO+1024}"]
    return l
def q_reads(va):
    l = [f"v_add_u32 v{va+t}, s{80+t}, v1" for t in range(4)]
    for t in range(4):
        l.append(f"ds_read_b128 {vr(Q+8*t,4)}, v{va+t}")
        l.append(f"ds_read_b128 {vr(Q+8*t+4,4)}, v{va+t} offset:1024")
    return l
PATS = {0: (2, 6, 13, 18), 2: (2, 9, 13, 22), 3: (2, 10, 13, 22), 4: (2, 8, 12, 21), 5: (2, 9, 13, 21)}
def att_slot(e, n, cur, prv, nxt, pre=None, post=None):
    sc = SB[n % 2]; sn = SB[(n+1) % 2]
    ex = lambda k: f"v_exp_f32 v{sc+k}, v{sc+k}"
    c = lambda k: f"v_cvt_pk_bf16_f32 v{P+k}, v{sc+2*k}, v{sc+2*k+1}"
    M = [mfma(O+16*prv[1], KVR[prv[0]]+12, P+4, O+16*prv[1]),
         mfma(sn, KVR[nxt[0]], Q+8*nxt[1], None) if nxt else None,
         mfma(sn, KVR[nxt[0]]+4, Q+8*nxt[1]+4, sn) if nxt else None,
         mfma(O+16*cur[1], KVR[cur[0]]+8, P, O+16*cur[1])]
    V = [ex(0), ex(1), ex(2), c(0), ex(3), ex(4), c(1), ex(5), ex(6), c(2), ex(7), ex(8), c(3), ex(9), ex(10), c(4),
         ex(11), ex(12), c(5), ex(13), ex(14), ex(15), c(6), c(7)]
    pat = PATS[OPT["pattern"]]
    for k, v in enumerate(V):
        if k in pat:
            m = pat.index(k)
            for x in (pre or {}).get(m, []): e(x)
            if M[m]: e(M[m])
            for x in (post or {}).get(m, []): e(x)
        e(v)

def gen(a):
    a.label(KNAME)
    a("s_cmp_ge_u32 s2, 256")
    a("s_cbranch_scc1 EXIT")
    a("s_load_dwordx16 s[4:19], s[0:1], 0")
    a("s_load_dwordx8 s[20:27], s[0:1], 64")
    a("s_load_dwordx2 s[28:29], s[0:1], 96")
    diag_start(a)
    a("v_lshrrev_b32 v1, 6, v0")
    a("v_and_b32 v0, 63, v0")
    a("v_readfirstlane_b32 s67, v1")
    a("v_lshlrev_b32 v1, 4, v0")
    a("s_and_b32 s68, s2, 7")
    a("s_lshr_b32 s69, s2, 3")
    if OPT["map"] == 0:
        a("s_and_b32 s70, s69, 3")
        a("s_lshr_b32 s71, s68, 1")
        a("s_lshl_b32 s71, s71, 2")
        a(f"s_add_u32 s{sI}, s71, s70")
        a(f"s_lshr_b32 s{sV}, s69, 2")
        a(f"s_sub_u32 s{sNP}, s{sV}, 1")
        a(f"s_and_b32 s{sJH}, s68, 1")
        a(f"s_mul_i32 s71, s{sJH}, 7")
        a(f"s_add_u32 s{sJ}, s71, s{sNP}")
        a(f"s_add_u32 s70, s{sJH}, 14")
        a(f"s_cmp_eq_u32 s{sV}, 0")
        a(f"s_cselect_b32 s{sJ}, s70, s{sJ}")
        a(f"s_lshl_b32 s{sTB}, s{sI}, 1")
        a(f"s_add_u32 s{sTB}, s{sTB}, s{sJH}")
        a(f"s_sub_u32 s{sG}, s2, 32")
    else:
        a(f"s_lshr_b32 s{sI}, s69, 1")
        a(f"s_and_b32 s{sJH}, s69, 1")
        a(f"s_lshl_b32 s{sJ}, s68, 1")
        a(f"s_add_u32 s{sJ}, s{sJ}, s{sJH}")
        a(f"s_sub_u32 s{sV}, 7, s68")
        a(f"s_lshl_b32 s{sG}, s68, 5")
        a(f"s_add_u32 s{sG}, s{sG}, s69")
        a(f"s_mul_i32 s{sTB}, s{sG}, 293")
        a(f"s_lshr_b32 s{sTB}, s{sTB}, 11")
        a(f"s_mul_i32 s70, s{sTB}, 7")
        a(f"s_sub_u32 s{sNP}, s{sG}, s70")
    a(f"s_and_b32 s{sW}, s67, 3")
    a("s_cmp_lt_u32 s67, 4")
    a("s_cbranch_scc1 AW")
    gen_b(a)
    INB[0] = 0
    gen_a(a)

def gen_b(a):
    INB[0] = 1
    a("v_lshrrev_b32 v23, 3, v0")
    a("v_lshrrev_b32 v24, 4, v0")
    a("v_and_b32 v25, 7, v0")
    a("v_xor_b32 v25, v25, v24")
    a(f"s_lshl_b32 s67, s{sI}, 7")
    a(f"s_lshl_b32 s68, s{sW}, 5")
    a("s_add_u32 s67, s67, s68")
    a("v_add_u32 v26, s67, v23")
    a("v_mul_u32_u24 v26, 896, v26")
    a("v_lshl_add_u32 v2, v25, 4, v26")
    a("v_xor_b32 v27, 4, v25")
    a("v_lshl_add_u32 v3, v27, 4, v26")
    a(f"v_add_u32 v4, {2*(8*896-1024)}, v2")
    a(f"v_add_u32 v5, {3*(8*896-1024)}, v3")
    a(f"v_add_u32 v3, {1*(8*896-1024)}, v3")
    a("v_lshrrev_b32 v26, 2, v0")
    a(f"s_lshl_b32 s67, s{sW}, 4")
    a("v_add_u32 v26, s67, v26")
    a("v_and_b32 v27, 3, v0")
    a("v_lshlrev_b32 v27, 4, v27")
    a("v_mul_u32_u24 v10, 896, v26")
    a(f"s_mul_i32 s68, s{sJ}, 56")
    a("v_add3_u32 v10, v10, v27, s68")
    a("v_mul_u32_u24 v11, 56, v26")
    a("v_add_u32 v11, v11, v27")
    a("v_add_u32 v26, s67, v24")
    a("v_mul_u32_u24 v26, 3584, v26")
    a("v_and_b32 v27, 15, v0")
    a("v_lshlrev_b32 v25, 2, v24")
    a("v_xor_b32 v27, v27, v25")
    a("v_lshl_add_u32 v26, v27, 4, v26")
    a(f"s_lshl_b32 s67, s{sJ}, 8")
    a("v_add_u32 v6, s67, v26")
    for m_ in (1, 2, 3):
        a(f"v_add_u32 v{6+m_}, {m_*(4*3584-1024)}, v6")
    a(f"s_lshl_b32 s76, s{sW}, 12")
    a(f"s_lshl_b32 s77, s{sW}, 10")
    a("s_waitcnt lgkmcnt(0)")
    srd(a, X_, 4, SZ_X)
    srd(a, WQ_, 6, SZ_WQ)
    a(f"s_cmp_eq_u32 s{sV}, 0")
    a("s_cbranch_scc1 B_SPARE")
    srd(a, WA_, 16, SZ_WG)
    srd(a, WB_, 18, SZ_WG)
    a(f"s_and_b32 s79, s{sI}, 3")
    a(f"s_mul_i32 s79, s79, {OPT['rot']}")
    vm = VM()
    def dma_list(s):
        base = (s % 3) * STG
        l = []
        for m_ in range(4):
            pre = f"s_add_u32 m0, s76, {base}\ns_lshl_b32 s67, s79, 7\n" if m_ == 0 else ""
            l.append(pre + f"buffer_load_dwordx4 v{2+m_}, {S4(X_)}, s67 offen offset:{1024*m_} lds")
        l.append(f"s_add_u32 m0, s77, {base+49152}\ns_mul_i32 s67, s79, {64*896}\nbuffer_load_dwordx4 v10, {S4(WQ_)}, s67 offen lds")
        for R, o_ in ((WA_, 16384), (WB_, 32768)):
            for m_ in range(4):
                pre = f"s_add_u32 m0, s76, {base+o_}\ns_mul_i32 s67, s79, {64*3584}\n" if m_ == 0 else ""
                l.append(pre + f"buffer_load_dwordx4 v{6+m_}, {S4(R)}, s67 offen offset:{1024*m_}{' nt' if OPT['wnt'] & 1 else ''} lds")
        l[-1] += "\ns_add_u32 s79, s79, 1\ns_cmp_eq_u32 s79, 7\ns_cselect_b32 s79, 0, s79"
        return l
    def issue(s, lo=0, hi=13):
        for x in dma_list(s)[lo:hi]: a(x); vm.issue(f"st{s}")
    def bar(s):
        a(f"s_waitcnt vmcnt({vm.wait_for(f'st{s}')})")
        if s: bstamp(a, 2*s-2, 1)
        a("s_barrier")
        if s: bstamp(a, 2*s-1, 1)
    def pf(kind):
        D = "v[32:35]"
        if kind == "x":
            a(f"s_lshl_b32 s68, s{sI}, 4")
            a(f"s_add_u32 s68, s68, s{sJ}")
            a("s_lshl_b32 s68, s68, 2")
            a(f"s_add_u32 s68, s68, s{sW}")
            a("s_mul_i32 s68, s68, 1792")
            a(f"buffer_load_dwordx4 {D}, v1, {S4(X_)}, s68 offen"); vm.issue("p")
            a(f"buffer_load_dwordx4 {D}, v1, {S4(X_)}, s68 offen offset:768"); vm.issue("p")
        elif kind[0] == "w":
            c = int(kind[1:])
            a(f"s_add_u32 s68, s78, {c*64*3584}")
            a(f"buffer_load_dwordx4 {D}, v12, {S4(M1_)}, s68 offen{' nt' if OPT['wnt'] & 2 else ''}"); vm.issue("p")
        elif kind == "q":
            a(f"s_lshl_b32 s68, s{sG}, 2")
            a(f"s_add_u32 s68, s68, s{sW}")
            a("s_mul_i32 s68, s68, 448")
            a("s_mov_b64 exec, 0xfffffff")
            a(f"buffer_load_dwordx4 {D}, v1, {S4(WQ_)}, s68 offen"); vm.issue("p")
            a("s_mov_b64 exec, -1")
        elif kind == "d":
            srd(a, M1_, 20, SZ_WG)
            srd(a, M2_, 12, SZ_WQ)
            a(f"s_lshl_b32 s68, s{sG}, 2")
            a(f"s_add_u32 s68, s68, s{sW}")
            a("s_mul_i32 s69, s68, 448")
            a("s_mul_i32 s68, s68, 1792")
            a(f"buffer_load_dwordx4 {D}, v1, {S4(M1_)}, s68 offen"); vm.issue("p")
            a(f"buffer_load_dwordx4 {D}, v1, {S4(M1_)}, s68 offen offset:768"); vm.issue("p")
            a("s_mov_b64 exec, 0xfffffff")
            a(f"buffer_load_dwordx4 {D}, v1, {S4(M2_)}, s69 offen"); vm.issue("p")
            a("s_mov_b64 exec, -1")
    PFS = {0: {}, 1: {0: ["q", "w1", "x", "w3", "w5"], 6: ["d"]},
           2: {0: ["q", "w1", "x"], 1: ["w3", "w5"], 6: ["d"]},
           3: {0: ["q", "w1", "x"], 1: ["w3"], 2: ["w5"], 6: ["d"]},
           4: {0: ["w1", "q", "x", "w3"], 2: ["w5"], 6: ["d"]},
           5: {0: ["q", "w1", "x"], 1: ["w3", "w5", "d"]},
           6: {0: ["q", "w1", "x"], 1: ["w3", "w5"], 4: ["d"]},
           7: {0: ["x"], 4: ["d"]}, 8: {0: ["x"], 6: ["d"]}, 9: {4: ["d"]}, 10: {0: ["x"], 2: ["d"]},
           11: {0: ["x"]}, 13: {-1: ["x"]}, 14: {0: ["q", "w1", "x", "w3", "w5"]}, 15: {0: ["w5"]}, 16: {0: ["q", "w1", "w3"], 1: ["w5"]}, 17: {0: ["w2", "q"], 1: ["w4"], 2: ["w6"]}, 12: {0: ["q", "w1", "x"], 1: ["w3", "w5"]}}[OPT["pf"]]
    def pfs(s_):
        for k in PFS.get(s_, []): pf(k)
    bstamp(a, 0, 4)
    pfs(-1)
    issue(0, 0, 5)
    if OPT["pf"]:
        a(f"s_and_b32 s68, s{sW}, 1")
        a("s_cmp_eq_u32 s68, 0")
        a(f"s_cselect_b32 s{M1_}, s16, s18")
        a(f"s_cselect_b32 s{M1_+1}, s17, s19")
        a(f"s_mov_b32 s{M1_+2}, {SZ_WG}")
        a(f"s_mov_b32 s{M1_+3}, 0x00020000")
        a(f"s_lshl_b32 s68, s{sI}, 2")
        a("v_add_u32 v12, s68, v24")
        a("v_mul_u32_u24 v12, 3584, v12")
        a("v_and_b32 v13, 15, v0")
        a("v_lshl_add_u32 v12, v13, 4, v12")
        a(f"s_lshr_b32 s78, s{sW}, 1")
        a(f"s_mul_i32 s78, s78, {64*3584}")
        a(f"s_lshl_b32 s68, s{sJ}, 8")
        a("s_add_u32 s78, s78, s68")
    pfs(-2)
    issue(0, 5)
    pfs(0)
    issue(1, 0, OPT["b0"])
    bstamp(a, 1, 4)
    bar(0)
    bstamp(a, 2, 4)
    issue(1, OPT["b0"]); pfs(1); issue(2, 0, OPT["b1"])
    bar(1)
    issue(2, OPT["b1"]); pfs(2)
    issue(3, 0, OPT["b2"])
    bar(2)
    issue(3, OPT["b2"]); pfs(3); issue(4, 0, OPT["b3"])
    bar(3)
    issue(4, OPT["b3"]); pfs(4)
    issue(5); pfs(5)
    bar(4)
    issue(6); pfs(6)
    bstamp(a, 0, 3)
    srd(a, WS_, 28, WS_SIZE)
    a(f"v_mov_b32 v15, {TAG_L}")
    a("ds_read_b32 v16, v15")
    a("v_lshlrev_b32 v12, 7, v0")
    a(f"s_mul_i32 s74, s{sW}, {R_SZ}")
    a(f"s_add_u32 s74, s74, {R_L}")
    a("v_add_u32 v2, s74, v1")
    srd(a, WA_, 20, SZ_WG)
    srd(a, WB_, 12, SZ_WQ)
    a("v_lshrrev_b32 v13, 3, v0")
    a("v_mul_u32_u24 v4, 896, v13")
    a("v_bfe_u32 v13, v0, 4, 1")
    a("v_lshlrev_b32 v13, 2, v13")
    a("v_and_b32 v14, 7, v0")
    a("v_xor_b32 v13, v13, v14")
    a("v_lshl_add_u32 v4, v13, 4, v4")
    a(f"s_lshl_b32 s67, s{sNP}, 7")
    a("v_add_u32 v4, s67, v4")
    a(f"v_add_u32 v5, {8*896-1024}, v4")
    a(f"s_mul_i32 s82, s{sW}, {448*896}")
    NR1 = OPT["nr1"]
    UNIT = {k: (4 if k < NR1 else SEQ[(k - 14) % 11]) for k in range(36)}
    soff = lambda k: uoff(UNIT[k])
    kst = lambda k: 4*((k % 14) >> 1) + (k & 1) + (2 if k >= 14 else 0)
    pool = list(range(80, 256, 8))
    wreg = {}; hreg = {}
    def wraw(k):
        wreg[k] = dst = pool.pop(0)
        a(f"s_add_u32 s67, s82, {kst(k)*16*896}")
        a(f"buffer_load_dwordx4 {vr(dst,4)}, v4, {S4(WA_)}, s67 offen"); vm.issue(f"r{k}")
        a(f"buffer_load_dwordx4 {vr(dst+4,4)}, v5, {S4(WA_)}, s67 offen offset:1024"); vm.issue(f"r{k}")
    for k in range(OPT["ra"]): wraw(k)
    bar(5)
    for k in range(OPT["ra"], OPT["rb"]): wraw(k)
    for b in range(2):
        a(f"s_xor_b32 s67, s{sW}, {b}")
        a(f"s_lshl_b32 s68, s{sI}, 2")
        a("s_add_u32 s67, s67, s68")
        a("s_mul_i32 s67, s67, 144")
        a(f"s_lshl_b32 s68, s{sJ}, 3")
        a("s_add_u32 s67, s67, s68")
        a(f"s_and_b32 s68, s{sW}, 1")
        a("s_lshl_b32 s68, s68, 2")
        a("s_add_u32 s67, s67, s68")
        a("s_lshl_b32 s67, s67, 10")
        a(f"s_add_u32 s{80+b}, s67, {B2_OFF}")
    a(f"s_lshr_b32 s75, s{sW}, 1")
    a(f"s_lshl_b32 s76, s{sNP}, 1")
    a("s_add_u32 s76, s76, s75")
    a(f"s_and_b32 s59, s{sW}, 1")
    a(f"s_lshl_b32 s78, s{sTB}, 1")
    a("s_add_u32 s78, s78, s59")
    for v, x_ in ((6, 0), (7, 1)):
        a(f"s_xor_b32 s67, s78, {x_}")
        a(f"s_mul_i32 s67, s67, {144*1024}")
        a(f"s_add_u32 s67, s67, {B2_OFF}")
        a(f"v_add_u32 v{v}, s67, v1")
    lane_fields(a, 13, 14, 11, 9)
    a("v_lshl_add_u32 v9, v13, 2, v14")
    a("v_lshl_add_u32 v9, v9, 7, v11")
    a("v_add_u32 v9, s74, v9")
    a("v_lshrrev_b32 v14, 1, v14")
    a("v_xor_b32 v14, s75, v14")
    a("v_xor_b32 v13, 1, v14")
    a("v_lshl_add_u32 v10, v13, 6, v9")
    a("v_lshl_add_u32 v9, v14, 6, v9")
    a("s_mul_i32 s83, s75, 7")
    a("s_add_u32 s79, s83, 3")
    a("s_add_u32 s67, s75, 14")
    a("s_cmp_eq_u32 s59, 1")
    a("s_cselect_b32 s79, s67, s79")
    a(f"s_mul_i32 s79, s79, {28*896}")
    a("s_lshl_b32 s67, s59, 2")
    a("s_add_u32 s83, s83, s67")
    a(f"s_mul_i32 s83, s83, {28*896}")
    a(f"s_lshl_b32 s69, s{sI}, 4")
    a(f"s_add_u32 s69, s69, s{sJ}")
    a("s_lshl_b32 s69, s69, 2")
    a(f"s_add_u32 s69, s69, s{sW}")
    a("s_lshl_b32 s69, s69, 7")
    a(f"s_add_u32 s54, s69, {F2B_OFF}")
    a(f"s_add_u32 s69, s69, {F2_OFF}")
    a(f"s_lshr_b32 s67, s{sTB}, 1")
    a("s_lshl_b32 s67, s67, 13")
    a(f"s_add_u32 s52, s67, {F2_OFF}")
    a(f"s_add_u32 s53, s67, {F2B_OFF}")
    a(f"s_lshl_b32 s67, s{sW}, 2")
    a("v_add_u32 v11, s67, v15")
    a("v_lshrrev_b32 v13, 2, v0")
    a("v_and_b32 v14, 1, v0")
    a("v_lshl_add_u32 v13, v13, 1, v14")
    a(f"s_mul_i32 s67, s{sW}, 7")
    a("v_subrev_u32 v13, s67, v13")
    a("v_cmp_gt_u32 s[56:57], 7, v13")
    a("v_bfe_u32 v14, v0, 1, 1")
    a(f"s_and_b32 s67, s{sTB}, 1")
    a(f"v_cmp_eq_u32 vcc, s67, v14")
    a("s_and_b64 s[56:57], s[56:57], vcc")
    a(f"s_mul_i32 s73, s{sW}, 28672")
    a("v_mov_b32 v17, 0")
    a("s_waitcnt lgkmcnt(0)")
    a(f"v_readfirstlane_b32 s{sTAG}, v16")
    bar(6)
    bstamp(a, 1, 3)
    o_clear(a, 20); vm.issue("c"); vm.issue("c")
    if OPT["kw"]: lds_wait(a, 11, 13, 1, 48, sleep=1)
    for k in range(OPT["rb"], NR1): wraw(k)
    bstamp(a, 2, 3)
    def wdma(k):
        a(f"s_add_u32 m0, s74, {soff(k)}")
        if k < 28:
            a(f"s_add_u32 s67, s82, {kst(k)*16*896}"); R = WA_
        else:
            kk = k - 28; R = WB_
            if kk < 6: a(f"s_add_u32 s67, s83, {(28*(kk>>1)+16*(kk&1))*896}")
            else: a(f"s_add_u32 s67, s79, {16*(kk&1)*896}")
        a(f"buffer_load_dwordx4 v4, {S4(R)}, s67 offen lds"); vm.issue(f"w{k}")
        a(f"buffer_load_dwordx4 v5, {S4(R)}, s67 offen offset:1024 lds"); vm.issue(f"w{k}")
    def trs(dst, k, va=9):
        return [f"ds_read_b64_tr_b16 {vr(dst+4*aa+2*t,2)}, v{va+aa} offset:{soff(k)+t*1024}" for aa in range(2) for t in range(2)]
    def wread(k):
        wreg[k] = dst = pool.pop(0)
        if f"w{k}" in vm.q: a(f"s_waitcnt vmcnt({vm.wait_for(f'w{k}')})")
        for x in trs(dst, k): a(x)
    def wconv(k):
        dst = wreg[k]
        n = f"vmcnt({vm.wait_for(f'r{k}')}) " if f"r{k}" in vm.q else ""
        a(f"s_waitcnt {n}lgkmcnt(6)")
        a(f"ds_write_b128 v2, {vr(dst,4)} offset:{soff(k)}")
        a(f"ds_write_b128 v2, {vr(dst+4,4)} offset:{soff(k)+1024}")
        for x in trs(dst, k): a(x)
    def handover(aa):
        lds_wait(a, 11, 13, 1 + aa, 16, sleep=1)
        a("s_setprio 3")
        for k in range(4):
            a(f"ds_read_b128 {vr(32+16*aa+4*k,4)}, v2 offset:{4096*aa+1024*k}")
        for k in range(4):
            a(f"s_waitcnt lgkmcnt({3-k})")
            a(f"buffer_store_dwordx4 {vr(32+16*aa+4*k,4)}, v1, {S4(WS_)}, s{80+k//2} offen offset:{2048*aa+1024*(k%2)} sc1{' nt' if OPT['hnt'] & 1 else ''}"); vm.issue(f"hs{aa}")
        a("s_setprio 0")
    def sig(so, n):
        a(f"s_waitcnt vmcnt({n})")
        a("s_mov_b64 exec, 1")
        a(f"buffer_store_dword v16, v17, {S4(WS_)}, {so} offen sc1"); vm.issue("f")
        a("s_mov_b64 exec, -1")
    for k in range(OPT["nc0"]): wconv(k)
    bstamp(a, 10, 3)
    handover(0)
    bstamp(a, 3, 3)
    for k in range(OPT["nc0"], OPT["nc1"]): wconv(k)
    bstamp(a, 4, 3)
    sig("s69", vm.wait_for("hs0"))
    bstamp(a, 5, 3)
    handover(1)
    bstamp(a, 6, 3)
    for k in range(OPT["nc1"], OPT["nc2"]): wconv(k)
    sig("s54", vm.wait_for("hs1"))
    diag_stamp(a, 2); bstamp(a, 0, 2); bstamp(a, 7, 3)
    nextd = NR1; nextw = NR1
    if OPT["nda"]:
        assert OPT["nc2"] >= NR1 or all(UNIT[k] != 4 for k in range(NR1, NR1 + OPT["nda"]))
        lds_wait(a, 15, 13, 4, 8)
        for _ in range(OPT["nda"]):
            wdma(nextd); nextd += 1
    poll(a, 12, "s52", 56, 13, sleep=2)
    diag_stamp(a, 3); bstamp(a, 1, 2); bstamp(a, 8, 3)
    ACC2 = 16; NH = OPT["nr"]
    c2 = lambda aa, b: ACC2 + 16*(2*b+aa)
    vm = VM()
    def hload(k):
        hreg[k] = sl = pool.pop(0)
        o_ = kst(k)*1024
        a(f"s_add_u32 s67, s73, {o_ & ~4095}")
        for b in range(2):
            a(f"buffer_load_dwordx4 {vr(sl+4*b,4)}, v{6+b}, {S4(WS_)}, s67 offen offset:{o_ & 4095} sc1{' nt' if OPT['hnt'] & 2 else ''}"); vm.issue(f"h{k}")
    nexth = 0
    while nexth < NH and pool:
        hload(nexth); nexth += 1
    for k in range(OPT["nc2"], NR1): wconv(k)
    if not OPT["nda"]: lds_wait(a, 15, 13, 4, 8)
    else: a("s_waitcnt lgkmcnt(0)")
    bstamp(a, 9, 3)
    for _ in range(OPT["nd0"]):
        wdma(nextd); nextd += 1
    a("v_and_b32 v3, 31, v0")
    a("v_lshlrev_b32 v3, 2, v3")
    a("s_lshl_b32 s67, s78, 7")
    a(f"s_add_u32 s67, s67, {GATE_OFF}")
    a(f"buffer_load_dword v8, v3, {S4(WS_)}, s67 offen sc1"); vm.issue("g")
    for k in range(28):
        issued = 0
        if nextw < 28 and nextw <= k + OPT["wah"]:
            wread(nextw); nextw += 1; issued = 4
        assert k in wreg and not (issued and nextw - 1 == k)
        w_ = f"vmcnt({vm.wait_for(f'h{k}')}) " if f"h{k}" in vm.q else ""
        a(f"s_waitcnt {w_}lgkmcnt({issued})")
        for b in (1, 0):
            for aa in range(2):
                a(mfma(c2(aa,b), wreg[k]+4*aa, hreg[k]+4*b, None if k == 0 else c2(aa,b)))
        pool.append(wreg[k]); pool.append(hreg[k])
        if k == OPT["kp"]:
            a("s_mov_b64 exec, s[56:57]")
            a(f"buffer_load_dword v13, v12, {S4(WS_)}, s53 offen sc1"); vm.issue("p2")
            a("s_mov_b64 exec, -1")
        for _ in range(2):
            if nexth < 28 and nexth <= k + NH and len(pool) > 1:
                if nexth == 14:
                    if "p2" in vm.q: a(f"s_waitcnt vmcnt({vm.wait_for('p2')})")
                    a(f"v_cmp_eq_u32 vcc, s{sTAG}, v13")
                    a("s_and_b64 vcc, vcc, s[56:57]")
                    a("s_cmp_eq_u64 vcc, s[56:57]")
                    slow(a, lambda o: poll(o, 12, "s53", 56, 13, sleep=2))
                hload(nexth); nexth += 1
        done = nextw - (1 if issued else 0)
        for _ in range(2 if k >= 20 else 1):
            if nextd < 36 and (nextd - 11 < NR1 or nextd - 11 < done):
                wdma(nextd); nextd += 1
        if k in (0, 6, 13, 20, 27): bstamp(a, 2 + (0, 6, 13, 20, 27).index(k), 2)
    assert nextd == 36 and nextw == 28, (nextd, nextw)
    if OPT["xp"]: a("s_setprio 3")
    a(f"s_xor_b32 s67, s{sW}, 1")
    a(f"s_mul_i32 s67, s67, {R_SZ}")
    a(f"s_add_u32 s67, s67, {R_L}")
    a("v_add_u32 v3, s67, v1")
    a(f"s_xor_b32 s67, s{sW}, 2")
    a(f"s_mul_i32 s67, s67, {R_SZ}")
    a(f"s_add_u32 s67, s67, {R_L}")
    a("v_add_u32 v11, s67, v1")
    a("s_lshl_b32 s67, s75, 2")
    a("v_add_u32 v7, s67, v15")
    a("s_lshl_b32 s67, s59, 2")
    a("v_add_u32 v12, s67, v15")
    a("v_mov_b32 v14, 1")
    for ch in range(8):
        a(f"ds_write_b128 v2, {vr(ACC2+32+4*ch,4)} offset:{xoff(ch)}")
    a(f"s_mul_i32 s67, s59, {R_SZ}")
    a("v_subrev_u32 v9, s67, v9")
    a("v_subrev_u32 v10, s67, v10")
    a(f"v_add_u32 v4, {R_SZ}, v9")
    a(f"v_add_u32 v5, {R_SZ}, v10")
    a("s_waitcnt vmcnt(0)")
    a(arrive(7, 14, 32))
    lds_wait(a, 7, 13, 2, 32, 1)
    bstamp(a, 7, 2)
    e = LQ(a)
    for ch in range(8):
        e(f"ds_read_b128 {vr(ACC2+32+4*ch,4)}, v3 offset:{xoff(ch)}")
    e("ds_read_b32 v13, v15 offset:12")
    e(arrive(7, 14, 32))
    a("v_sub_f32 v8, 1.0, v8")
    srd(a, M1_, 24, SZ_OUT)
    a("s_lshl_b32 s83, s75, 14")
    a(f"s_add_u32 s83, s83, {112*1024}")
    for g in range(1, 4): a(f"s_add_u32 s{79+g}, s83, {4096*g}")
    a("s_mov_b32 s79, s83")
    a(f"s_mul_i32 s69, s78, {32*896}")
    a("s_lshl_b32 s68, s76, 6")
    a("s_add_u32 s69, s69, s68")
    a("s_mov_b64 s[56:57], -1")
    WO = 96
    for r in range(0, 32, 2): e(f"v_pk_add_f32 {vr(ACC2+r,2)}, {vr(ACC2+r,2)}, {vr(ACC2+32+r,2)}")
    of = lambda k: 48 + 4*k if k < 8 else 224 + 4*(k-8)
    oload = lambda k: f"buffer_load_dwordx4 {vr(of(k),4)}, v6, {S4(WS_)}, s{79+k//4} offen offset:{(k%4)*1024} sc1"
    order = [7, 0, 1, 2, 3, 4, 5, 6]
    def oloads(o):
        for u in order:
            o(oload(2*u)); o(oload(2*u+1))
    e("v_readfirstlane_b32 s71, v13")
    if OPT["oth"] < 4:
        a(f"s_cmp_ge_u32 s71, {OPT['oth']}")
        a("s_cselect_b32 s71, 4, 0")
    a("s_cmp_lt_u32 s71, 4")
    a("s_cbranch_scc1 O_LATER")
    oloads(a)
    a.label("O_LATER")
    wl = []
    for u in order:
        for kk in (2*u, 2*u+1): wl += trs(WO+8*kk, 28 + (kk & 7), 9 if kk < 8 else 4)
    va = [f"v_pk_mul_f32 {vr(ACC2+r,2)}, {vr(ACC2+r,2)}, v[8:9] op_sel_hi:[1,0]" for r in range(0, 32, 2)]
    va += ["v_and_b32 v3, 31, v0", "v_mul_u32_u24 v3, 896, v3", "v_lshrrev_b32 v13, 5, v0", "v_lshl_add_u32 v3, v13, 4, v3"]
    while wl:
        for _ in range(3):
            if wl: e(wl.pop(0))
        if va: e(va.pop(0))
    assert not va
    e("ds_read_b32 v13, v7 offset:32")
    bstamp(a, 8, 2)
    diag_stamp(a, 4); bstamp(a, 9, 2)
    if OPT["xp"]: a("s_setprio 0")
    a("s_cmp_ge_u32 s71, 4")
    def wait_a(o):
        o("v_mov_b32 v8, 0")
        lds_wait(o, 15, 8, max(1, OPT['oth']), 12, 2)
        oloads(o)
    slow(a, wait_a)
    a("s_waitcnt lgkmcnt(0)")
    a("v_readfirstlane_b32 s70, v13")
    a("s_cmp_ge_u32 s70, 4")
    slow(a, lambda o: lds_wait(o, 7, 13, 4, 32))
    diag_stamp(a, 5); bstamp(a, 10, 2)
    C0, C1 = ACC2, ACC2 + 16
    a(f"s_mov_b32 s72, {SPIN_MAX}")
    a("s_movk_i32 s71, 0xff")
    def chk(n):
        u = order[n]; r0, r1 = of(2*u), of(2*u+1)
        return [f"s_waitcnt vmcnt({14-2*n})\nv_max3_u32 v13, v{r0}, v{r0+1}, v{r0+2}",
                f"v_max3_u32 v13, v13, v{r0+3}, v{r1}\nv_max3_u32 v13, v13, v{r1+1}, v{r1+2}",
                f"v_max_u32 v13, v13, v{r1+3}\nv_cmp_eq_u32 vcc, -1, v13"]
    for x in chk(0): a(x)
    for n, u in enumerate(order):
        r0, r1 = of(2*u), of(2*u+1)
        a("s_cmp_lg_u64 vcc, 0")
        a("s_cbranch_scc1 O_PASS")
        c = chk(n+1) if n < 7 else ["", "", ""]
        a(mfma(C1, WO+16*u+4, r0, C1))
        a(f"s_bitset0_b32 s71, {u}")
        a(mfma(C1, WO+16*u+12, r1, C1))
        a(c[0])
        a(mfma(C0, WO+16*u, r0, C0))
        a(c[1])
        a(mfma(C0, WO+16*u+8, r1, C0))
        a(c[2])
    a("s_branch O_DONE")
    a.label("O_PASS")
    for n, u in enumerate(order):
        r0, r1 = of(2*u), of(2*u+1)
        a(f"s_bitcmp0_b32 s71, {u}")
        a(f"s_cbranch_scc1 O_SK{u}")
        a(f"s_waitcnt vmcnt({14-2*n})")
        a(f"v_max3_u32 v13, v{r0}, v{r0+1}, v{r0+2}")
        a(f"v_max3_u32 v13, v13, v{r0+3}, v{r1}")
        a(f"v_max3_u32 v13, v13, v{r1+1}, v{r1+2}")
        a(f"v_max_u32 v13, v13, v{r1+3}")
        a("v_cmp_eq_u32 vcc, -1, v13")
        a("s_and_b64 vcc, vcc, s[56:57]")
        a(f"s_cbranch_scc1 O_SK{u}")
        a(mfma(C1, WO+16*u+4, r0, C1))
        a(f"s_bitset0_b32 s71, {u}")
        a(mfma(C0, WO+16*u, r0, C0))
        a(mfma(C1, WO+16*u+12, r1, C1))
        a(mfma(C0, WO+16*u+8, r1, C0))
        a.label(f"O_SK{u}")
    a("s_cmp_eq_u32 s71, 0")
    a("s_cbranch_scc1 O_DONE")
    if OPT["osl"]: a(f"s_sleep {OPT['osl']}")
    for u in order:
        a(f"s_bitcmp0_b32 s71, {u}")
        a(f"s_cbranch_scc1 O_NL{u}")
        a(oload(2*u)); a(oload(2*u+1))
        a.label(f"O_NL{u}")
    a("s_sub_u32 s72, s72, 1")
    a("s_cmp_gt_i32 s72, 0")
    a("s_cselect_b64 s[56:57], -1, 0")
    a("s_waitcnt vmcnt(0)")
    a("s_branch O_PASS")
    a.label("O_DONE")
    a("s_nop 7"); a("s_nop 1")
    for ch in range(4):
        a(f"ds_write_b128 v2, {vr(C1+4*ch,4)} offset:{xoff(ch)}")
    a(arrive(12, 14, 40))
    bstamp(a, 11, 2)
    lds_wait(a, 12, 13, 2, 40)
    for ch in range(4):
        a(f"ds_read_b128 {vr(C1+4*ch,4)}, v11 offset:{xoff(ch)}")
    T = 48
    a("s_nop 2")
    for ch in range(4):
        a(f"s_waitcnt lgkmcnt({3-ch})")
        for r in (4*ch, 4*ch+2):
            a(f"v_pk_add_f32 {vr(C0+r,2)}, {vr(C0+r,2)}, {vr(C1+r,2)}")
        for r in (2*ch, 2*ch+1): a(f"v_cvt_pk_bf16_f32 v{T+r}, v{C0+2*r}, v{C0+2*r+1}")
    if OPT["rs"] == 17: diag_stamp(a, 6)
    osc = {0: "", 1: " sc1", 2: " nt"}[OPT["osc"]]
    a(f"v_permlane32_swap_b32 v{T}, v{T+2}")
    a(f"v_permlane32_swap_b32 v{T+1}, v{T+3}")
    a(f"buffer_store_dwordx4 {vr(T,4)}, v3, {S4(M1_)}, s69 offen{osc}")
    a(f"v_permlane32_swap_b32 v{T+4}, v{T+6}")
    a(f"v_permlane32_swap_b32 v{T+5}, v{T+7}")
    a(f"buffer_store_dwordx4 {vr(T+4,4)}, v3, {S4(M1_)}, s69 offen offset:32{osc}")
    diag_end(a, 1)
    a("s_endpgm")

    a.label("B_SPARE")
    a(f"s_cmp_eq_u32 s{sJH}, 0")
    a(f"s_cselect_b32 s{WA_}, s8, s10")
    a(f"s_cselect_b32 s{WA_+1}, s9, s11")
    a(f"s_mov_b32 s{WA_+2}, {SZ_WK}")
    a(f"s_mov_b32 s{WA_+3}, 0x00020000")
    srd(a, M2_, 22, 896)
    vm = VM()
    a(f"s_mov_b32 m0, {GW_L}")
    a("s_nop 0")
    a(f"buffer_load_dwordx4 v1, {S4(M2_)}, 0 offen lds"); vm.issue("gw")
    for s in range(7):
        a(f"s_add_u32 m0, s77, {W2_L+s*4096}")
        a(f"s_movk_i32 s67, {s*3584}")
        a(f"buffer_load_dwordx4 v11, {S4(WA_)}, s67 offen lds"); vm.issue(f"st{s}")
        a(f"s_add_u32 m0, s76, {s*16384}")
        a(f"s_movk_i32 s67, {s*128}")
        for m_ in range(4):
            a(f"buffer_load_dwordx4 v{2+m_}, {S4(X_)}, s67 offen offset:{1024*m_} lds"); vm.issue(f"st{s}")
        if s >= OPT["sl"]:
            a(f"s_waitcnt vmcnt({vm.wait_for(f'st{s-OPT[chr(115)+chr(108)]}')})")
            a("s_barrier")
    for s in range(7 - OPT["sl"], 7):
        a(f"s_waitcnt vmcnt({vm.wait_for(f'st{s}')})")
        a("s_barrier")
    a("s_barrier")
    for s in range(7):
        a(f"s_add_u32 m0, s77, {W2_L+s*4096}")
        a(f"s_mov_b32 s67, {s*64*896}")
        a(f"buffer_load_dwordx4 v10, {S4(WQ_)}, s67 offen lds")
    if OPT["spf"]: spare_pf(a)
    a(f"s_waitcnt vmcnt({17 if OPT['spf'] else 0})")
    a("s_barrier")
    a("s_endpgm")

def gen_a(a):
    a.label("AW")
    a(f"s_setprio {OPT['prioA']}")
    lane_fields(a, 13, 14, 15, 12)
    a(f"s_lshl_b32 s67, s{sW}, 12")
    a("v_and_b32 v10, 31, v0")
    a("v_lshlrev_b32 v10, 7, v10")
    a("v_add_u32 v10, s67, v10")
    a("v_bfe_u32 v11, v0, 1, 3")
    a("v_xor_b32 v11, v13, v11")
    for ks in range(4):
        a(f"v_xor_b32 v{2+ks}, {2*ks}, v11")
        a(f"v_lshl_add_u32 v{2+ks}, v{2+ks}, 4, v10")
    if OPT["cpf"]:
        a("s_getpc_b64 s[80:81]")
        a.label("PCREF")
        a(f"s_sub_u32 s80, s80, PCREF-{KNAME}")
        a("s_subb_u32 s81, s81, 0")
        a(f"s_mov_b32 s82, KEND-{KNAME}")
        a("s_mov_b32 s83, 0x00020000")
        a(f"s_lshl_b32 s67, s{sW}, 5")
        a("s_add_u32 s67, s67, s69")
        a("s_lshl_b32 s67, s67, 10")
        a("buffer_load_dwordx4 v[216:219], v1, s[80:83], s67 offen")
    a("v_mov_b32 v248, 0")
    a("v_lshlrev_b32 v16, 2, v0")
    a(f"v_add_u32 v16, {TAG_L}, v16")
    a("s_waitcnt lgkmcnt(0)")
    if OPT["rs"] == 7: diag_stamp(a, 6)
    a("ds_write_b32 v16, v248")
    srd(a, WS_, 28, WS_SIZE)
    srd(a, M2_, 26, 256)
    a(f"s_or_b32 s67, s2, s{sW}")
    a("s_cmp_lg_u32 s67, 0")
    a("s_cbranch_scc1 A_NONONCE")
    a(f"s_mov_b32 s67, {EP_OFF}")
    a(f"buffer_load_dword v17, v248, {S4(WS_)}, s67 offen sc1")
    a("s_waitcnt vmcnt(0)")
    a("v_add_u32 v17, 1, v17")
    a("v_max_u32 v17, 1, v17")
    a("s_mov_b64 exec, 1")
    a(f"buffer_store_dword v17, v248, {S4(M2_)}, 0 offen sc1")
    a(f"buffer_store_dword v17, v248, {S4(WS_)}, s67 offen sc1")
    a("s_mov_b64 exec, -1")
    a.label("A_NONONCE")
    a(f"s_lshl_b32 s67, s{sW}, 16")
    a(f"s_add_u32 s{M1_}, s28, s67")
    a(f"s_addc_u32 s{M1_+1}, s29, 0")
    a(f"s_mov_b32 s{M1_+2}, 65536")
    a(f"s_mov_b32 s{M1_+3}, 0x00020000")
    a(f"s_lshl_b32 s74, s{sI}, 2")
    a(f"s_add_u32 s74, s74, s{sW}")
    a("s_lshl_b32 s69, s74, 7")
    a(f"s_add_u32 s68, s69, {F1_OFF}")
    a(f"s_add_u32 s69, s69, {GATE_OFF}")
    a("s_movk_i32 s73, 4096")
    for t in range(4):
        a(f"s_add_u32 s67, s{sW}, {1+t}")
        a("s_and_b32 s67, s67, 3")
        a(f"s_mul_i32 s{40+t}, s67, 12288")
        a(f"s_add_u32 s{80+t}, s{40+t}, {R_L+QO}")
        a(f"s_add_u32 s{40+t}, s{40+t}, {ORED_L + (4096*t if t < 3 else 0)}")
    a(f"s_mov_b32 s76, {hex(f32bits(QSCALE))}")
    a("s_mov_b32 s77, s76")
    a("s_mov_b32 s78, -1")
    a("s_mov_b32 s79, 0")
    a(f"s_mul_i32 s75, s{sW}, {R_SZ}")
    a(f"s_add_u32 s75, s75, {R_L}")
    a("v_and_b32 v250, 15, v0")
    a(f"s_lshl_b32 s67, s{sW}, 4")
    a("v_add_u32 v250, s67, v250")
    a("v_lshlrev_b32 v250, 7, v250")
    a("v_bfe_u32 v16, v0, 4, 1")
    a("v_lshl_add_u32 v250, v16, 13, v250")
    a(f"v_add_u32 v250, {F1_OFF}, v250")
    a("v_writelane_b32 v250, s68, 32")
    a("s_mov_b32 s44, -1")
    a("s_mov_b32 s45, 1")
    a(f"s_cmp_eq_u32 s{sV}, 0")
    a("s_cbranch_scc1 A_SPARE")
    for ks in range(4):
        a(f"v_xor_b32 v{6+ks}, 0x1000, v{2+ks}")
    a(f"s_and_b32 s67, s{sW}, 1")
    a("s_lshl_b32 s67, s67, 1")
    a("v_lshl_add_u32 v16, v12, 8, v15")
    a("v_add_u32 v16, 16384, v16")
    a("v_xor_b32 v17, s67, v14")
    a("v_lshl_add_u32 v10, v17, 6, v16")
    a("v_xor_b32 v17, 1, v17")
    a("v_lshl_add_u32 v11, v17, 6, v16")
    a("v_lshl_add_u32 v12, v12, 6, v15")
    a("v_add_u32 v12, 49152, v12")
    a(f"v_mov_b32 v13, {TAG_L}")
    ACC = 72
    cG = lambda aa, b: ACC + 16*(2*aa+b)
    cU = lambda aa, b: ACC + 64 + 16*(2*aa+b)
    cQ = ACC + 128
    nb1 = OPT["nb1"]
    steps = [(q, 'f') for q in range(20)] + [(q, 'a') for q in range(20, 24)] + [(q, 'b') for q in range(20, 20+nb1)] \
          + [(q, 'a') for q in range(24, 28)] + [(q, 'b') for q in range(20+nb1, 28)]
    NA = 28 + nb1
    MM = []; FRS = []; last = {}
    for n, (q, mode) in enumerate(steps):
        aas = {'f': (0, 1), 'a': (0,), 'b': (1,)}[mode]
        def use(fid, acc, fa, fb):
            for f in (fa, fb):
                if f not in last: FRS.append(f)
                last[f] = len(MM)
            MM.append((n, acc, fa, fb, q == 0))
        if mode != 'b': use(None, cQ, (n, 'q'), (n, 'x0'))
        for aa in aas:
            for b in range(2):
                use(None, cG(aa,b), (n, 'g', aa), (n, 'x0' if b == 0 else 'x1'))
                use(None, cU(aa,b), (n, 'u', aa), (n, 'x0' if b == 0 else 'x1'))
    def finstr(f, r):
        q = steps[f[0]][0]; ks = q % 4
        if f[1] == 'x0': return [f"ds_read_b128 {vr(r,4)}, v{2+ks}"]
        if f[1] == 'x1': return [f"ds_read_b128 {vr(r,4)}, v{6+ks}"]
        if f[1] == 'q': return [f"ds_read_b64_tr_b16 {vr(r+2*t,2)}, v12 offset:{ks*1024+t*256}" for t in range(2)]
        mo = 0 if f[1] == 'g' else 16384
        return [f"ds_read_b64_tr_b16 {vr(r+2*t,2)}, v{10+f[2]} offset:{ks*4096+t*1024+mo}" for t in range(2)]
    stage = lambda f: steps[f[0]][0] // 4
    first_mm = {}
    for k, m in enumerate(MM): first_mm.setdefault(m[0], k)
    quads = list(range(16, 72, 4))
    reg = {}
    def h_pack(aa, b, t0, t1, va):
        g, u = cG(aa,b), cU(aa,b)
        l = [f"v_pk_mul_f32 {vr(g+r,2)}, {vr(g+r,2)}, {vr(u+r,2)}" for r in range(0, 16, 2)]
        l += [f"v_cvt_pk_bf16_f32 v{t0+r}, v{g+2*r}, v{g+2*r+1}" for r in range(4)]
        l += [f"ds_write_b128 v{va}, {vr(t0,4)} offset:{(aa*4+b*2)*1024}"]
        l += [f"v_cvt_pk_bf16_f32 v{t1+r-4}, v{g+2*r}, v{g+2*r+1}" for r in range(4, 8)]
        l += [f"ds_write_b128 v{va}, {vr(t1,4)} offset:{(aa*4+b*2+1)*1024}"]
        return l
    a("s_waitcnt lgkmcnt(0)")
    a("s_barrier")
    diag_stamp(a, 0)
    e = LQ(a)
    cur_stage = 0; seen = {0}; nf = 0; adds = None
    extras = []
    def issue_frag():
        nonlocal nf
        f = FRS[nf]; nf += 1
        reg[f] = r = quads.pop(0)
        l = finstr(f, r)
        for x in l: e(x)
        return len(l)
    while nf < len(FRS) and FRS[nf][0] == 0: issue_frag()
    kvf = kv_first()
    late = ["v_add_u32 v251, s75, v1", "v_mov_b32 v249, 1", f"s_lshl_b32 s67, s{sW}, 2", "v_add_u32 v15, s67, v13"]
    late += h_pack(0, 0, cU(0,0), cU(0,0)+4, 251) + h_pack(0, 1, cU(0,1), cU(0,1)+4, 251) + ["ds_write_b32 v15, v249 offset:16"]
    late += q_pack(cQ, cU(0,0)+8, 251) + [arrive(13, 249, 4)] + zero(cG(0,0), 24) + ["v_mov_b32 v2, v250\nds_read_b32 v250, v13 offset:4"] + zero(cG(0,0)+24, 8)
    events = {}
    def ev_tag0():
        a("s_waitcnt vmcnt(0)")
        a(f"v_readfirstlane_b32 s{sTAG}, v249")
    def ev_tag():
        a(f"s_cmp_lg_u32 s{sTAG}, 0")
        slow(a, lambda o: spin_tag(o, 249, 248, lab("HT")))
        e("ds_write_b32 v13, v249")
    def ev_kv0():
        a("s_waitcnt vmcnt(0)")
        a(f"v_cmp_eq_u32 vcc, s{sTAG}, v252")
    def ev_kv():
        a("s_and_b64 vcc, vcc, s[44:45]")
        a("s_cmp_eq_u64 vcc, s[44:45]")
        if OPT["nbk"]:
            a(f"s_cselect_b32 s{M1_+2}, 65536, 0")
            a(f"s_cselect_b32 s46, s69, {WS_SIZE}")
            kvf[-1] = kvf[-1].replace("s69", "s46")
        else:
            slow(a, lambda o: kvp_check(o, 250, 252))
        extras.extend(kvf)
        extras.append(f"s_lshl_b32 s67, s{sW}, 2\nv_add_u32 v15, s67, v13\nds_write_b32 v15, v13 offset:48")
    events[first_mm[OPT['ntl']]] = lambda: extras.append(f"buffer_load_dword v249, v248, {S4(M2_)}, 0 offen sc1")
    events[first_mm[OPT['ntw']] + 5] = ev_tag0
    events[first_mm[OPT['ntw']] + 6] = ev_tag
    events[first_mm[OPT["npoll"]]] = lambda: extras.append(kvp_issue(250, 252))
    events[first_mm[OPT["nchk"]]] = ev_kv0
    events[first_mm[OPT["nchk"]] + 1] = ev_kv
    events[first_mm[NA] + 1] = lambda: extras.extend(late)
    AST = {first_mm[20]: 0, first_mm[24+nb1]: 1, first_mm[NA]: 2, first_mm[NA+3]: 3, len(MM)-4: 4}
    for k, (n, acc, fa, fb, first) in enumerate(MM):
        if k in AST: diag_stamp(a, AST[k], 1)
        assert fa in reg and fb in reg, (k, fa, fb)
        e(mfma(acc, reg[fa], reg[fb], None if first else acc))
        for f in (fa, fb):
            if last[f] == k: quads.append(reg[f])
        if k in events: events[k]()
        used = 0
        while nf < len(FRS) and used < 2 + (0 if n < 20 else 1):
            f = FRS[nf]
            if stage(f) != cur_stage:
                if adds is None:
                    delta = ((stage(f) % 3) - (cur_stage % 3)) * STG
                    adds = [f"v_add_u32 v{r}, {delta & 0xffffffff}, v{r}" for r in range(2, 13)]
                while adds and used < OPT["budget"]:
                    e(adds.pop(0)); used += 1
                if adds: break
                if stage(f) not in seen:
                    if first_mm[f[0]] - k > OPT["bpos"]: break
                    e.drain(); a("s_barrier"); seen.add(stage(f)); used = min(used, 1)
                cur_stage = stage(f); adds = None
                continue
            if not quads or f[0] > n + (1 if n < 19 else 2): break
            used += issue_frag()
        while extras and used < OPT["budget"]:
            x = extras.pop(0); e(x); used += 3 if "buffer_" in x else (2 if "ds_write" in x else 1)
    for x in extras: e(x)
    diag_stamp(a, 1); diag_stamp(a, 5, 1)
    if OPT["nbk"]:
        def late_kv(o):
            o(kvp_issue(2, 3))
            kvp_check(o, 2, 3)
            o(f"s_mov_b32 s{M1_+2}, 65536")
            o("s_movk_i32 s73, 4096")
            for x in kv_first(): o(x.replace("v15", "v3"))
        a(f"s_cmp_lg_u32 s{M1_+2}, 0")
        slow(a, late_kv)
    e("v_readfirstlane_b32 s70, v250")
    a("s_cmp_ge_u32 s70, 4")
    slow(a, lambda o: lds_wait(o, 13, 250, 4, 4))
    for x in q_reads(252): e(x)
    a("v_mov_b32 v11, 2")
    for x in zero(P+4, 4) + zero(KVR[2]+12, 4): e(x)
    for x in h_pack(1, 0, 40, 44, 251): e(x)
    e("s_waitcnt vmcnt(5)\n" + mfma(SB[0], KVR[0], Q, None))
    h3 = h_pack(1, 1, 48, 52, 251)
    for x in h3[:6]: e(x)
    e(mfma(SB[0], KVR[0]+4, Q+4, SB[0]))
    for x in h3[6:]: e(x)
    e("ds_write_b32 v15, v11 offset:16")
    e(arrive(13, 249, 8))
    for x in zero(cG(1,0), 32): a(x)
    for t in range(4): e(f"v_mov_b32 v2, v{Q+8*t+4}")
    a.label("ATT")
    a("s_mov_b32 s75, 4")
    diag_stamp(a, 2)
    a.label("ATT_LOOP")
    for r in range(3):
        for t in range(4):
            prv = (r, t-1) if t else ((r-1) % 3, 3)
            nxt = (r, t+1) if t < 3 else ((r+1) % 3, 0)
            pre = {1: ["s_waitcnt vmcnt(4)"]} if t == 3 else None
            post = {0: kvload(prv[0], "s73") + ["s_add_u32 s73, s73, 4096"]} if t == 0 else {}
            if (r, t) == (2, 3): post[3] = ["s_sub_u32 s75, s75, 1"]
            att_slot(a, 4*r + t, (r, t), prv, nxt, pre, post)
    a("s_cmp_lg_u32 s75, 0")
    a("s_cbranch_scc1 ATT_LOOP")
    tail = [(0,0),(0,1),(0,2),(1,0),(1,1),(1,2),(2,0),(2,1),(3,0),(3,1),(2,2),(3,2),(0,3),(1,3),(2,3),(3,3)]
    e = LQ(a)
    ow = lambda t: [f"ds_write_b128 v{4+t}, {vr(O+16*t+4*ch,4)} offset:{1024*ch}" for ch in range(4)]
    orr = lambda t: [f"ds_read_b128 {vr(O+16*t+4*ch,4)}, v7 offset:{4096*t+1024*ch}" for ch in range(4)]
    padd = lambda d, s_: [f"v_pk_add_f32 {vr(d+r,2)}, {vr(d+r,2)}, {vr(s_+r,2)}" for r in range(0, 16, 2)]
    sp = lambda l: {k: l[k::4] for k in range(4)}
    sq = lambda l: {k: l[(len(l)*k)//4:(len(l)*(k+1))//4] for k in range(4)}
    POST = {
        0: {0: kvload(2, "s73") + ["s_add_u32 s73, s73, 4096"], 3: kvload(3, "s73")},
        1: sq([f"v_add_u32 v{4+t}, s{40+t}, v1" for t in range(4)]),
        2: {0: [f"v_mov_b32 v13, {TAG_L}"], 3: ["v_mov_b32 v12, 1"]},
        10: sq(ow(0)), 11: sq(ow(1)),
        12: {3: ow(2)[:2]},
        13: {0: ow(2)[2:] + [arrive(13, 12, 4)], 3: ["ds_read_b32 v8, v13 offset:4"]},
    }
    PRE = {2: {1: ["s_waitcnt vmcnt(8)"]}, 5: {1: ["s_waitcnt vmcnt(4)"]}, 7: {1: ["s_waitcnt vmcnt(0)"]}}
    for n, cur in enumerate(tail):
        prv = tail[n-1] if n else (2, 3)
        nxt = tail[n+1] if n + 1 < 16 else None
        if n == 14:
            e("v_readfirstlane_b32 s70, v8")
            a("s_cmp_ge_u32 s70, 8")
            slow(a, lambda o: lds_wait(o, 13, 8, 8, 4))
            POST[14] = sq(orr(0) + orr(1) + orr(2))
            POST[15] = sq(([arrive(13, 12, 12)] if OPT["opos"] == 0 else []) + padd(O, O+16) + padd(O, O+32))
        att_slot(e, n, cur, prv, nxt, PRE.get(n), POST.get(n))
    F = O + 48
    a("v_mov_b64 v[6:7], 0")
    a("s_nop 0")
    a(mfma(F, KVR[3]+12, P+4, F))
    diag_stamp(a, 3)
    o_addr(a, 67, 68)
    a("s_nop 1")
    for x in padd(F, O): e(x)
    a(f"v_mov_b32 v8, v{F+12}")
    a(f"v_mov_b32 v9, v{F+12}")
    for r in range(0, 16, 2):
        a(f"v_pk_fma_f32 v[6:7], {vr(F+r,2)}, 0, v[6:7] op_sel_hi:[1,0,1]")
        if r == 2: a("v_permlane32_swap_b32 v8, v9")
    a("v_add_f32 v6, v6, v7")
    a(f"v_mov_b32 v7, {hex(f32bits(2.0**90))}")
    a("v_add_f32 v6, v6, v9")
    a(f"v_cmp_le_f32 vcc, {hex(f32bits(2.0**-40))}, v6")
    a("v_cmp_le_f32 s[70:71], v6, v7")
    a("s_and_b64 vcc, vcc, s[70:71]")
    a("s_cmp_eq_u64 vcc, exec")
    a("s_cbranch_scc0 ATT_SLOW")
    a.label("ATT_FIN")
    a("v_rcp_f32 v9, v9")
    a("s_nop 0")
    a("v_mul_f32 v8, v9, v14")
    for hh in range(2):
        for r in range(8*hh, 8*hh+8, 2): a(f"v_pk_mul_f32 {vr(F+r,2)}, {vr(F+r,2)}, v[8:9] op_sel_hi:[1,0]")
        for r in range(4*hh, 4*hh+4): a(f"v_cvt_pk_bf16_f32 v{P+r}, v{F+2*r}, v{F+2*r+1}")
        if hh:
            a(f"v_cndmask_b32 v{P+6}, 0, v{P+6}, s[78:79]")
            a(f"v_cndmask_b32 v{P+7}, 0, v{P+7}, s[78:79]")
        for r in range(4*hh, 4*hh+4): a(f"v_min_u32 v{P+r}, -2, v{P+r}")
        a(f"buffer_store_dwordx4 {vr(P+4*hh,4)}, v1, {S4(WS_)}, s67 offen offset:{1024*hh} sc1")
    if OPT["opos"] == 1: a(arrive(13, 12, 12))
    diag_stamp(a, 4); diag_stamp(a, 5)
    diag_end(a, 0)
    a.label("EXIT")
    a("s_endpgm")
    a.label("ATT_SLOW")
    Qo = Q + 24; KV = KVR[0]; S0, S1 = SB
    a(f"s_mov_b32 s73, {KV_OFF}")
    a(f"v_mov_b32 v6, 0xff800000")
    a.label("ATT_S1")
    a(f"buffer_load_dwordx4 {vr(KV,4)}, v1, {S4(WS_)}, s73 offen sc1")
    a(f"buffer_load_dwordx4 {vr(KV+4,4)}, v1, {S4(WS_)}, s73 offen offset:1024 sc1")
    a("s_waitcnt vmcnt(0)")
    a(mfma(S0, KV, Qo, None))
    a(mfma(S0, KV+4, Qo+4, S0))
    a("s_nop 15")
    for r in range(0, 16, 2):
        a(f"v_max3_f32 v6, v6, v{S0+r}, v{S0+r+1}")
    a("s_add_u32 s73, s73, 4096")
    a(f"s_cmp_lt_u32 s73, {KV_OFF+262144}")
    a("s_cbranch_scc1 ATT_S1")
    a("v_mov_b32 v7, v6")
    a("s_nop 1")
    a("v_permlane32_swap_b32 v6, v7")
    a("s_nop 1")
    a("v_max_f32 v6, v6, v7")
    for r in range(16): a(f"v_sub_f32 v{S1+r}, 0, v6")
    for r in range(16): a(f"v_mov_b32 v{F+r}, 0")
    a(f"s_mov_b32 s73, {KV_OFF}")
    a.label("ATT_S2")
    for m_ in range(4):
        a(f"buffer_load_dwordx4 {vr(KV+4*m_,4)}, v1, {S4(WS_)}, s73 offen offset:{1024*m_} sc1")
    a("s_waitcnt vmcnt(0)")
    a(mfma(S0, KV, Qo, S1))
    a(mfma(S0, KV+4, Qo+4, S0))
    a("s_nop 15")
    for r in range(16): a(f"v_exp_f32 v{S0+r}, v{S0+r}")
    a("s_nop 0")
    for r in range(8): a(f"v_cvt_pk_bf16_f32 v{P+r}, v{S0+2*r}, v{S0+2*r+1}")
    a("s_nop 1")
    a(mfma(F, KV+8, P, F))
    a(mfma(F, KV+12, P+4, F))
    a("s_add_u32 s73, s73, 4096")
    a(f"s_cmp_lt_u32 s73, {KV_OFF+262144}")
    a("s_cbranch_scc1 ATT_S2")
    a("s_nop 15")
    a(f"v_mov_b32 v8, v{F+12}")
    a(f"v_mov_b32 v9, v{F+12}")
    a("s_nop 1")
    a("v_permlane32_swap_b32 v8, v9")
    a("s_nop 1")
    a("s_branch ATT_FIN")

    a.label("A_SPARE")
    a("v_lshl_add_u32 v12, v12, 6, v15")
    a(f"v_add_u32 v12, {W2_L}, v12")
    a("v_lshlrev_b32 v10, 4, v13")
    a(f"v_add_u32 v10, {GW_L}, v10")
    a(f"v_mov_b32 v13, {TAG_L}")
    for ks in range(4):
        a(f"v_add_u32 v{6+ks}, 65536, v{2+ks}")
    o_clear(a, 252)
    cq, ck, cg = 200, 168, 184
    def spass(mode):
        e = LQ(a)
        for s_ in range(7):
            if s_ and mode != 'q':
                a("s_barrier")
                if s_ in (3, 6): diag_stamp(a, 1 if s_ == 3 else 2, 3)
            if s_ == 3 and mode != 'q': a(f"buffer_load_dword v249, v248, {S4(M2_)}, 0 offen sc1")
            base = 16 if (mode == 'k' or s_ % 2 == 0) else 136
            st = 12 if mode == 'k' else 8
            for ks in range(4):
                q = 4*s_ + ks; r = base + st*ks
                xa, xo = (2+ks, s_*16384) if s_ < 4 else (6+ks, (s_-4)*16384)
                e(f"ds_read_b128 {vr(r,4)}, v{xa} offset:{xo}")
                for t in range(2):
                    e(f"ds_read_b64_tr_b16 {vr(r+4+2*t,2)}, v12 offset:{q*1024+t*256}")
                if mode == 'k': e(f"ds_read_b128 {vr(r+8,4)}, v10 offset:{q*32}")
            for ks in range(4):
                q = 4*s_ + ks; r = base + st*ks; first = q == 0
                if mode == 'k':
                    e(mfma(ck, r+4, r, None if first else ck))
                    e(mfma(cg, r+8, r, None if first else cg))
                elif mode == 'v':
                    e(mfma(ck, r, r+4, None if first else ck))
                else:
                    e(mfma(cq, r+4, r, None if first else cq))
        if mode != 'q': diag_stamp(a, 3, 3)
    for x in zero(O, 64): a(x)
    a("s_lshl_b32 s68, s74, 12")
    a("s_lshl_b32 s58, s74, 7")
    a(f"s_lshl_b32 s67, s{sJH}, 13")
    a("s_add_u32 s46, s67, s58")
    a(f"s_add_u32 s46, s46, {F1_OFF}")
    a("s_mov_b32 s58, 256")
    a("s_waitcnt lgkmcnt(0)")
    a("s_barrier")
    diag_stamp(a, 0, 3)
    a(f"s_cmp_eq_u32 s{sJH}, 1")
    a("s_cbranch_scc1 A_V")
    spass('k')
    a("s_nop 7"); a("s_nop 2")
    for r in range(8):
        a(f"v_cvt_pk_bf16_f32 v{56+r}, v{ck+2*r}, v{ck+2*r+1}")
    a("v_cndmask_b32 v62, 0, v62, s[78:79]")
    a("v_cndmask_b32 v63, 0, v63, s[78:79]")
    a(f"buffer_store_dwordx4 v[56:59], v1, {S4(WS_)}, s68 offen sc1")
    a(f"buffer_store_dwordx4 v[60:63], v1, {S4(WS_)}, s68 offen offset:1024 sc1")
    a(f"v_mul_f32 v64, {hex(f32bits(-LOG2E))}, v{cg}")
    a("v_exp_f32 v64, v64")
    a("v_and_b32 v65, 31, v0")
    a("v_add_f32 v64, 1.0, v64")
    a("v_rcp_f32 v64, v64")
    a("v_lshlrev_b32 v65, 2, v65")
    a("s_mov_b64 exec, s[78:79]")
    a(f"buffer_store_dword v64, v65, {S4(WS_)}, s69 offen sc1")
    a("s_mov_b64 exec, -1")
    a("s_branch A_SP2")
    a.label("A_V")
    spass('v')
    a("v_and_b32 v65, 31, v0")
    a("v_cmp_gt_u32 vcc, 28, v65")
    a("v_cmp_eq_u32 s[70:71], 28, v65")
    a("v_mov_b32 v66, 0x3f803f80")
    a("s_nop 7")
    a("v_cndmask_b32 v66, 0, v66, s[70:71]")
    for r in range(8):
        a(f"v_cvt_pk_bf16_f32 v{56+r}, v{ck+2*r}, v{ck+2*r+1}")
    for r in range(8):
        a(f"v_cndmask_b32 v{56+r}, v66, v{56+r}, vcc")
    a(f"buffer_store_dwordx4 v[56:59], v1, {S4(WS_)}, s68 offen offset:2048 sc1")
    a(f"buffer_store_dwordx4 v[60:63], v1, {S4(WS_)}, s68 offen offset:3072 sc1")
    a.label("A_SP2")
    diag_stamp(a, 4, 3)
    a("s_waitcnt vmcnt(0)")
    a(f"v_readfirstlane_b32 s{sTAG}, v249")
    a(f"s_cmp_lg_u32 s{sTAG}, 0")
    a("s_cbranch_scc1 AS_HAVETAG")
    spin_tag(a, 249, 248, "AS_HAVETAG")
    a("s_mov_b64 exec, 1")
    a(f"buffer_store_dword v249, v248, {S4(WS_)}, s46 offen sc1")
    a("s_mov_b64 exec, -1")
    diag_stamp(a, 0); diag_stamp(a, 5, 3)
    a("s_barrier")
    a("s_barrier")
    spass('q')
    diag_stamp(a, 1)
    a(kvp_issue(250, 252))
    a("v_add_u32 v251, s75, v1")
    a("v_mov_b32 v249, 1")
    a("s_barrier")
    kvp_check(a, 250, 252)
    for x in kv_first(): a(x)
    for x in q_pack(cq, 40, 251): a(x)
    a(arrive(13, 249, 4))
    lds_wait(a, 13, 4, 4, 4)
    for x in q_reads(4) + zero(P+4, 4) + zero(KVR[2]+12, 4): a(x)
    a("s_waitcnt vmcnt(5) lgkmcnt(0)")
    a(mfma(SB[0], KVR[0], Q, None))
    a(mfma(SB[0], KVR[0]+4, Q+4, SB[0]))
    a("s_nop 7"); a("s_nop 1")
    a("s_branch ATT")
    a.lines += OOL.lines
    a.label("KEND")

def kd(name, nv, ns=102):
    return f""".amdhsa_kernel {name}
  .amdhsa_next_free_vgpr {nv}
  .amdhsa_next_free_sgpr {ns}
  .amdhsa_accum_offset {(nv+3)//4*4}
  .amdhsa_group_segment_fixed_size 0
  .amdhsa_kernarg_size 104
  .amdhsa_user_sgpr_count 2
  .amdhsa_user_sgpr_kernarg_segment_ptr 1
  .amdhsa_system_sgpr_workgroup_id_x 1
.end_amdhsa_kernel
"""

def main(out):
    hdr = open("cdna_kernels/" + NAME + ".s.ref").read().split("\n")
    top = [l for l in hdr if l.startswith(";") and "@launch" not in l and "Override" not in l and "grid=ceil" not in l]
    txt = "\n".join(top) + "\n"
    txt += f"; @launch grid=(256,1,1) block=(512,1,1) lds={LDS_SIZE}\n"
    txt += '.amdgcn_target "amdgcn-amd-amdhsa--gfx950"\n.text\n'
    a = Asm(); gen(a)
    body = f".globl {KNAME}\n.p2align 8\n.type {KNAME},@function\n" + a.text()
    rep = check_text(body)
    for r in rep: print(r)
    txt += body
    txt += '.section .rodata,"a"\n.p2align 6\n' + kd(KNAME, 256)
    open(out, "w").write(txt)
    print("wrote", out, len(txt), "bytes;", len(rep), "hazards")

if __name__ == "__main__":
    out = "cdna_kernels/" + NAME + ".s"
    for x in sys.argv[1:]:
        if x == "--diag": OPT["diag"] = 1
        elif "=" in x:
            k, v = x.split("="); assert k in OPT, k; OPT[k] = int(v)
        else: out = x
    main(out)
```
